```python
import torch

def _softmax(x, axis=-1):
    return torch.softmax(x, dim=axis)

def _gelu(x):
    return torch.nn.functional.gelu(x, approximate='tanh')

def _silu(x):
    return torch.nn.functional.silu(x)

def _sigmoid(x):
    return torch.sigmoid(x)

def _layernorm(x, axis=-1, eps=1e-05):
    m = x.mean(dim=axis, keepdim=True)
    v = x.var(dim=axis, keepdim=True, unbiased=False)
    return (x - m) / torch.sqrt(v + eps)

def _scatter_add(tgt, idx, src, axis=0):
    return tgt.clone().index_add_(axis, idx, src)

def _segment_sum(src, seg, n):
    out = torch.zeros((n,) + src.shape[1:], dtype=src.dtype)
    return out.index_add_(0, seg, src)

def _pad(x, pw):
    flat = tuple((v for pair in reversed(pw) for v in pair))
    return torch.nn.functional.pad(x, flat)
kernel_name = 'adaLN_cond__mha_block_cached__glu_gated_glu__decode'

def setup_inputs():

    _w = lambda a: (lambda t: t.to(torch.bfloat16) if t.is_floating_point() else t)(torch.as_tensor(a))

    def _A_setup():
        B, Sq, D = (4, 1, 512)
        H, Sk, Dh = (32, 8192, 128)
        return {'x': _w((lambda *s: torch.randn(*s, dtype=torch.bfloat16) * 0.05)(B, Sq, D)), 'k_cache': _w((lambda *s: torch.randn(*s, dtype=torch.bfloat16) * 3.2)(B, H, Sk, Dh)), 'v_cache': _w((lambda *s: torch.randn(*s, dtype=torch.bfloat16) * 0.4)(B, H, Sk, Dh)), 'wq': _w((lambda *s: torch.randn(*s, dtype=torch.bfloat16) * 3.2)(D, H * Dh) * D ** (-0.5)), 'wo': _w((lambda *s: torch.randn(*s, dtype=torch.bfloat16) * 0.4)(H * Dh, D) * (H * Dh) ** (-0.5))}
    _A_in = _A_setup()

    def _B_setup():
        B, S, D, F = (4, 1, 512, 1792)
        return {'x': _w((lambda *s: torch.randn(*s, dtype=torch.bfloat16) * 0.05)(B, S, D)), 'w_gate': _w((lambda *s: torch.randn(*s, dtype=torch.bfloat16) * 0.05)(D, F)), 'w_up': _w((lambda *s: torch.randn(*s, dtype=torch.bfloat16) * 0.05)(D, F)), 'w_down': _w((lambda *s: torch.randn(*s, dtype=torch.bfloat16) * 0.05)(F, D))}
    _B_in = _B_setup()
    return {'A_x': _A_in['x'], 'A_k_cache': _A_in['k_cache'], 'A_v_cache': _A_in['v_cache'], 'A_wq': _A_in['wq'], 'A_wo': _A_in['wo'], 'B_x': _B_in['x'], 'B_w_gate': _B_in['w_gate'], 'B_w_up': _B_in['w_up'], 'B_w_down': _B_in['w_down'], 'c': _w((lambda *s: torch.randn(*s, dtype=torch.bfloat16) * 0.1)(4, 512) * 8.0), 'w_mod': _w((lambda *s: torch.randn(*s, dtype=torch.bfloat16) * 0.1)(512, 6 * 512) * 512 ** (-0.5) * 8.0)}

def reference(A_x, A_k_cache, A_v_cache, A_wq, A_wo, B_x, B_w_gate, B_w_up, B_w_down, c, w_mod):

    def _A_ref(x, k_cache, v_cache, wq, wo):
        B, Sq, D = x.shape
        H, Dh = (32, 128)
        q = (lambda x, *d: x.permute(*d))((x @ wq).reshape(B, Sq, H, Dh), 0, 2, 1, 3)
        scores = torch.einsum('bhqd,bhkd->bhqk', q, k_cache) * Dh ** (-0.5)
        p = _softmax(scores, axis=-1)
        o = torch.einsum('bhqk,bhkd->bhqd', p, v_cache)
        return (lambda x, *d: x.permute(*d))(o, 0, 2, 1, 3).reshape(B, Sq, H * Dh) @ wo

    def _B_ref(x, w_gate, w_up, w_down):
        g = torch.einsum('bsd,df->bsf', x, w_gate)
        u = torch.einsum('bsd,df->bsf', x, w_up)
        h = _sigmoid(g) * u
        return torch.einsum('bsf,fd->bsd', h, w_down)
    x = A_x
    mod = (_silu(c) @ w_mod).reshape(c.shape[0], 6, 1, -1)
    sa, ca, ga, sb, cb, gb = (mod[:, 0].clone(), mod[:, 1].clone(), mod[:, 2].clone(), mod[:, 3].clone(), mod[:, 4].clone(), mod[:, 5].clone())
    h = _layernorm(x, axis=-1) * (1 + ca) + sa
    x = x + ga * _A_ref(h, A_k_cache, A_v_cache, A_wq, A_wo)
    h = _layernorm(x, axis=-1) * (1 + cb) + sb
    x = x + gb * _B_ref(h, B_w_gate, B_w_up, B_w_down)
    return x
```

```python
kernels = []
def add_kernel(name, body, vg, nwg, wg, lds, karg=16):
    args = "\n".join(f"      - {{.name: a{i}, .size: 8, .offset: {8*i}, .value_kind: global_buffer, .address_space: global}}" for i in range(karg//8))
    meta = f"""  - .name: {name}
    .symbol: {name}.kd
    .kernarg_segment_size: {karg}
    .kernarg_segment_align: 8
    .group_segment_fixed_size: 0
    .private_segment_fixed_size: 0
    .wavefront_size: 64
    .sgpr_count: 100
    .vgpr_count: {vg}
    .max_flat_workgroup_size: {wg}
    .args:
{args}
"""
    kd = f""".p2align 6
.amdhsa_kernel {name}
  .amdhsa_next_free_vgpr {vg}
  .amdhsa_next_free_sgpr 100
  .amdhsa_accum_offset {min(vg,256)}
  .amdhsa_group_segment_fixed_size 0
  .amdhsa_kernarg_size {karg}
  .amdhsa_user_sgpr_count 2
  .amdhsa_user_sgpr_kernarg_segment_ptr 1
  .amdhsa_system_sgpr_workgroup_id_x 1
.end_amdhsa_kernel
"""
    kernels.append((name, body, kd, meta, nwg, wg, lds))
def finish(base):
    out = ['.amdgcn_target "amdgcn-amd-amdhsa--gfx950"', '.text']
    out += [k[1] for k in kernels]
    out.append('.section .rodata,"a"')
    out += [k[2] for k in kernels]
    out.append(".amdgpu_metadata\n---\namdhsa.version: [1, 2]\namdhsa.kernels:")
    out += [k[3] for k in kernels]
    out.append("...\n.end_amdgpu_metadata")
    open(base + ".s", "w").write("\n".join(out) + "\n")
    open(base + ".list", "w").write("\n".join(f"{k[0]} {k[4]} {k[5]} {k[6]}" for k in kernels) + "\n")
```

```python
import sys
from gen_common import *
def kern(name, W, U, flags, B, nwg, rot, dma):
    per_wg = (512 << 20) // nwg
    half = per_wg // 2
    nload = per_wg // 1024 // W
    vg = 16 + (0 if dma else 4 * U)
    vg = (vg + 7) // 8 * 8
    s = []
    a = s.append
    a(f".globl {name}\n.p2align 8\n.type {name},@function\n{name}:")
    a("s_load_dwordx4 s[4:7], s[0:1], 0")
    a("v_lshrrev_b32 v1, 6, v0")
    a("v_and_b32 v2, 63, v0")
    a("s_nop 0")
    a("v_readfirstlane_b32 s20, v1")
    a("s_waitcnt lgkmcnt(0)")
    a("s_mov_b32 s8, s4\ns_and_b32 s9, s5, 0xffff\ns_mov_b32 s10, 0x20000000\ns_mov_b32 s11, 0x20000")
    a(f"s_cmp_ge_u32 s2, {nwg}\ns_cbranch_scc1 {name}_end")
    a("v_lshlrev_b32 v3, 4, v2")
    a(f"s_mul_i32 s21, s2, {half}")
    a(f"s_mul_i32 s22, s20, {1024*B}")
    a("s_add_u32 s21, s21, s22")
    steps = [(u // B) * (1024 * B * W) + (u % B) * 1024 for u in range(U)]
    iterstep = 1024 * U * W
    niter = nload // U
    hiter = niter // 2
    a(f"s_mul_i32 s26, s2, {rot*iterstep}")
    a(f"s_and_b32 s26, s26, {half-1}")
    a(f"s_mul_i32 s28, s20, {1024*U}")
    a("v_mov_b32 v8, 0")
    def ld(u):
        st = steps[u]
        a(f"s_add_u32 s24, s27, {st}")
        if dma:
            a(f"s_add_u32 m0, s28, {1024*u}")
            a("s_nop 0")
            a(f"buffer_load_dwordx4 v3, s[8:11], s24 offen {flags} lds")
        else:
            a(f"buffer_load_dwordx4 v[{16+4*u}:{19+4*u}], v3, s[8:11], s24 offen {flags}")
    a("s_add_u32 s27, s21, s26")
    for u in range(U): ld(u)
    a("s_mov_b32 s23, 1")
    a(f"{name}_loop:")
    a(f"s_add_u32 s26, s26, {iterstep}")
    a(f"s_and_b32 s26, s26, {half-1}")
    a(f"s_cmp_eq_u32 s23, {hiter}")
    a(f"s_cselect_b32 s25, {(256<<20)}, 0")
    a("s_add_u32 s21, s21, s25")
    a("s_add_u32 s27, s21, s26")
    for u in range(U):
        a(f"s_waitcnt vmcnt({U-1})")
        if not dma:
            a(f"v_or_b32 v8, v8, v{16+4*u}")
        ld(u)
    a("s_add_u32 s23, s23, 1")
    a(f"s_cmp_lt_u32 s23, {niter}")
    a(f"s_cbranch_scc1 {name}_loop")
    a("s_waitcnt vmcnt(0)")
    a("v_cmp_eq_u32 vcc, 0x12345, v8")
    a("s_and_saveexec_b64 s[26:27], vcc")
    a(f"s_cbranch_execz {name}_end")
    a("v_mov_b32 v5, 0\nglobal_store_dword v5, v8, s[6:7]")
    a(f"{name}_end:\ns_endpgm")
    lds = 1024*U*W if dma else 0
    add_kernel(name, "\n".join(s), vg, nwg, W*64, lds)
cfgs = eval(sys.argv[1])
for c in cfgs:
    W, U, flags, B, nwg, rot, dma = c
    name = f"k_w{W}_u{U}_{(flags or 'def').replace(' ','')}_b{B}_g{nwg}_r{rot}_d{dma}"
    kern(name, W, U, flags, B, nwg, rot, dma)
add_kernel("k_empty", ".globl k_empty\n.p2align 8\n.type k_empty,@function\nk_empty:\ns_endpgm", 8, 256, 256, 0)
finish("stream")
```
